```python
import torch

def _softmax(x, axis=-1):
    return torch.softmax(x, dim=axis)

def _gelu(x):
    return torch.nn.functional.gelu(x, approximate='tanh')

def _silu(x):
    return torch.nn.functional.silu(x)

def _sigmoid(x):
    return torch.sigmoid(x)

def _layernorm(x, axis=-1, eps=1e-05):
    m = x.mean(dim=axis, keepdim=True)
    v = x.var(dim=axis, keepdim=True, unbiased=False)
    return (x - m) / torch.sqrt(v + eps)

def _scatter_add(tgt, idx, src, axis=0):
    return tgt.clone().index_add_(axis, idx, src)

def _segment_sum(src, seg, n):
    out = torch.zeros((n,) + src.shape[1:], dtype=src.dtype)
    return out.index_add_(0, seg, src)

def _pad(x, pw):
    flat = tuple((v for pair in reversed(pw) for v in pair))
    return torch.nn.functional.pad(x, flat)
kernel_name = 'standalone__tree_speculative_verify_tree_attention_over_candidate_token_tree__decode'

def setup_inputs():

    _w = lambda a: (lambda t: t.to(torch.bfloat16) if t.is_floating_point() else t)(torch.as_tensor(a))
    B, Hq, Hkv, T, C, D = (2, 32, 32, 1, 8192, 192)
    tree_mask = torch.zeros((B, T, T), dtype=float)
    for b in range(B):
        parent = torch.zeros(T, dtype=torch.int64)
        for i in range(1, T):
            parent[i] = int(torch.randint(0, i, (1,)).item())
        for i in range(T):
            j = i
            tree_mask[b, i, j] = 1.0
            while j > 0:
                j = parent[j]
                tree_mask[b, i, j] = 1.0
    return {'q': _w((lambda *s: torch.randn(*s, dtype=torch.bfloat16) * 0.8)(B, Hq, T, D)), 'k_cache': _w((lambda *s: torch.randn(*s, dtype=torch.bfloat16) * 0.8)(B, Hkv, C, D)), 'v_cache': _w((lambda *s: torch.randn(*s, dtype=torch.bfloat16) * 0.05)(B, Hkv, C, D)), 'k_tree': _w((lambda *s: torch.randn(*s, dtype=torch.bfloat16) * 0.8)(B, Hkv, T, D)), 'v_tree': _w((lambda *s: torch.randn(*s, dtype=torch.bfloat16) * 0.05)(B, Hkv, T, D)), 'tree_mask': _w(tree_mask)}

def reference(q, k_cache, v_cache, k_tree, v_tree, tree_mask):
    B, Hq, T, D = q.shape
    Hkv, C = (k_cache.shape[1], k_cache.shape[2])
    rep = Hq // Hkv
    kc = (lambda x, n, axis: torch.repeat_interleave(x, n, dim=axis))(k_cache, rep, axis=1)
    vc = (lambda x, n, axis: torch.repeat_interleave(x, n, dim=axis))(v_cache, rep, axis=1)
    kt = (lambda x, n, axis: torch.repeat_interleave(x, n, dim=axis))(k_tree, rep, axis=1)
    vt = (lambda x, n, axis: torch.repeat_interleave(x, n, dim=axis))(v_tree, rep, axis=1)
    k = torch.concatenate([kc, kt], axis=2)
    v = torch.concatenate([vc, vt], axis=2)
    scale = D ** (-0.5)
    scores = torch.einsum('bhqd,bhkd->bhqk', q, k) * scale
    ctx_mask = torch.ones((B, 1, T, C), dtype=scores.dtype)
    tm = tree_mask[:, None, :, :].clone()
    full_mask = torch.concatenate([ctx_mask, tm], axis=-1)
    scores = scores + (1.0 - full_mask) * -1000000000.0
    p = _softmax(scores, axis=-1)
    return torch.einsum('bhqk,bhkd->bhqd', p, v)
```

```python
import struct, sys, math, argparse

NAME = "standalone__tree_speculative_verify_tree_attention_over_candidate_token_tree__decode"
HEADER = open("cdna_kernels/%s.s.ref" % NAME).read().split("; Override launch")[0] \
    if __name__ == "__main__" or True else ""

def f32(x):
    return struct.unpack("<I", struct.pack("<f", x))[0]

D = 192
C = 8192
NH = 64
ROW = 384
SCALE = D ** -0.5
CEXP = SCALE * math.log2(math.e)

def gen(S=4, NW=8, DEP=2, lflags="nt", headmajor=True, stamp=False):
    KPW = C // S
    NSTEP = KPW // 16 // NW
    STRIDE = NW * 6144
    G = NH * S
    o = []
    e = o.append
    VOFF = 1; VQO = 2; VM = 3; VL = 4; VNMC = 5; VS0 = 6; VS1 = 7; VMN = 8; VPP = 9
    VT = 10
    VQ = 16
    VA = 28
    VR = 52
    def KR(j): return VR + j * 48
    def VRr(j): return VR + j * 48 + 24
    NV = VR + DEP * 48
    NV = max(NV, VR + NW * 6 + 8, VR + S * 6 + 8)
    LDS = NW * 800
    e(HEADER.rstrip("\n"))
    e("; Override launch geometry by editing the next line.")
    e("; @launch grid=(%d,1,1) block=(%d,1,1) lds=%d" % (G, NW * 64, LDS))
    e('.amdgcn_target "amdgcn-amd-amdhsa--gfx950"')
    e(".text")
    e(".globl %s_kernel" % NAME)
    e(".p2align 8")
    e(".type %s_kernel,@function" % NAME)
    e("%s_kernel:" % NAME)
    e("  s_load_dwordx16 s[4:19], s[0:1], 0")
    e("  s_load_dwordx2 s[20:21], s[0:1], 64     ; ws")
    e("  s_cmp_ge_u32 s2, %d" % G)
    e("  s_cbranch_scc1 L_end")
    if headmajor:
        e("  s_lshr_b32 s60, s2, %d                 ; head" % int(math.log2(S)))
        e("  s_and_b32 s61, s2, %d                  ; split" % (S - 1))
    else:
        e("  s_and_b32 s60, s2, 63                  ; head")
        e("  s_lshr_b32 s61, s2, 6                  ; split")
    e("  v_and_b32 v%d, 7, v0" % VQO)
    e("  v_lshlrev_b32 v%d, 4, v%d               ; (lane&7)*16" % (VQO, VQO))
    e("  v_bfe_u32 v%d, v0, 3, 3" % VT)
    e("  v_lshrrev_b32 v%d, 6, v0               ; wave" % (VT + 1))
    e("  v_mul_u32_u24 v%d, %d, v%d" % (VT, ROW, VT))
    e("  v_mul_u32_u24 v%d, %d, v%d" % (VT + 1, 6144, VT + 1))
    e("  v_add3_u32 v%d, v%d, v%d, v%d" % (VOFF, VQO, VT, VT + 1))
    e("  s_mul_i32 s62, s60, %d" % (C * ROW))
    e("  s_mul_i32 s63, s61, %d" % (KPW * ROW))
    e("  s_add_u32 s62, s62, s63")
    e("  s_mul_i32 s63, s60, %d                 ; head*384" % ROW)
    e("  s_mov_b32 s26, %d" % (KPW * ROW))
    e("  s_mov_b32 s27, 0x20000")
    e("  s_mov_b32 s30, %d" % (KPW * ROW))
    e("  s_mov_b32 s31, 0x20000")
    e("  s_mov_b32 s34, %d" % ROW)
    e("  s_mov_b32 s35, 0x20000")
    e("  s_cmp_eq_u32 s61, 0")
    e("  s_cselect_b32 s38, %d, 0" % ROW)
    e("  s_mov_b32 s39, 0x20000")
    e("  s_mov_b32 s42, s38")
    e("  s_mov_b32 s43, 0x20000")
    e("  s_waitcnt lgkmcnt(0)")
    e("  s_add_u32 s32, s4, s63")
    e("  s_addc_u32 s33, s5, 0")
    e("  s_add_u32 s24, s6, s62")
    e("  s_addc_u32 s25, s7, 0")
    e("  s_add_u32 s28, s8, s62")
    e("  s_addc_u32 s29, s9, 0")
    e("  s_add_u32 s36, s10, s63")
    e("  s_addc_u32 s37, s11, 0")
    e("  s_add_u32 s40, s12, s63")
    e("  s_addc_u32 s41, s13, 0")
    e("  s_load_dword s64, s[14:15], 0")
    for i in range(3):
        e("  buffer_load_dwordx4 v[%d:%d], v%d, s[32:35], 0 offen offset:%d" % (VQ + 4 * i, VQ + 4 * i + 3, VQO, 128 * i))
    for i in range(3):
        e("  buffer_load_dwordx4 v[%d:%d], v%d, s[36:39], 0 offen offset:%d" % (VA + 4 * i, VA + 4 * i + 3, VOFF, 128 * i))
    for i in range(3):
        e("  buffer_load_dwordx4 v[%d:%d], v%d, s[40:43], 0 offen offset:%d" % (VA + 12 + 4 * i, VA + 12 + 4 * i + 3, VOFF, 128 * i))
    e("  v_cmp_gt_u32 s[66:67], s38, v%d        ; lanes that own the tree token" % VOFF)
    OFFS = [0, 128, 256, 3072, 3200, 3328]
    def loads(base, srd):
        for i, of in enumerate(OFFS):
            e("  buffer_load_dwordx4 v[%d:%d], v%d, s[%d:%d], 0 offen offset:%d %s" %
              (base + 4 * i, base + 4 * i + 3, VOFF, srd, srd + 3, of, lflags))
    for j in range(DEP):
        loads(KR(j), 24)
        loads(VRr(j), 28)
        e("  v_add_u32 v%d, %d, v%d" % (VOFF, STRIDE, VOFF))
    if stamp:
        e("  s_memrealtime s[70:71]")
    e("  s_mov_b32 s56, 0x%08x                  ; scale*log2(e)" % f32(CEXP))
    e("  s_mov_b32 s57, 0x05040100")
    e("  s_mov_b32 s58, 0x07060302")
    e("  s_mov_b32 s59, %d" % NSTEP)
    e("  s_waitcnt lgkmcnt(0)")
    e("  s_lshr_b32 s65, s60, 5                 ; batch")
    e("  s_lshl_b32 s65, s65, 4")
    e("  s_lshr_b32 s64, s64, s65")
    e("  s_lshl_b32 s64, s64, 16")
    e("  v_mov_b32 v%d, s64" % VT)
    e("  v_sub_f32 v%d, 1.0, v%d" % (VT, VT))
    e("  v_mul_f32 v%d, 0x%08x, v%d             ; (1-mask)*-1e9/scale" % (VT, f32(-1e9 / SCALE), VT))
    e("  v_mov_b32 v%d, 0" % VS0)
    e("  s_waitcnt vmcnt(%d)" % (12 * DEP))
    for i in range(12):
        e("  v_dot2c_f32_bf16 v%d, v%d, v%d" % (VS0, VA + i, VQ + i))
    e("  s_nop 2")
    def red8(regs):
        for mod in ["quad_perm:[1,0,3,2]", "quad_perm:[2,3,0,1]", "row_half_mirror"]:
            for r in regs:
                e("  v_add_f32_dpp v%d, v%d, v%d %s row_mask:0xf bank_mask:0xf" % (r, r, r, mod))
            if mod != "row_half_mirror":
                e("  s_nop %d" % (max(0, 2 - len(regs))))
    red8([VS0])
    e("  v_add_f32 v%d, v%d, v%d" % (VS0, VS0, VT))
    e("  v_mov_b32 v%d, 0xff800000" % VM)
    e("  v_cndmask_b32 v%d, v%d, v%d, s[66:67]" % (VM, VM, VS0))
    e("  v_cndmask_b32 v%d, 0, 1.0, s[66:67]" % VL)
    for j in range(12):
        src = VA + 12 + j
        e("  v_lshlrev_b32 v%d, 16, v%d" % (VA + 2 * j, src))
        e("  v_and_b32 v%d, 0xffff0000, v%d" % (VA + 2 * j + 1, src))
    e("  v_mov_b32 v%d, 0" % VNMC)
    e("L_loop:")
    for j in range(DEP):
        k = KR(j); v = VRr(j)
        e("  v_mov_b32 v%d, 0" % VS0)
        e("  v_mov_b32 v%d, 0" % VS1)
        e("  s_waitcnt vmcnt(%d)" % (12 * DEP - 6))
        for i in range(12):
            e("  v_dot2c_f32_bf16 v%d, v%d, v%d" % (VS0, k + i, VQ + i))
            e("  v_dot2c_f32_bf16 v%d, v%d, v%d" % (VS1, k + 12 + i, VQ + i))
        loads(k, 24)
        red8([VS0, VS1])
        e("  v_max3_f32 v%d, v%d, v%d, v%d" % (VMN, VM, VS0, VS1))
        e("  v_cmp_gt_f32 vcc, v%d, v%d" % (VMN, VM))
        e("  s_cbranch_vccz L_skip%d" % j)
        e("  v_sub_f32 v%d, v%d, v%d" % (VT, VM, VMN))
        e("  v_mul_f32 v%d, s56, v%d" % (VT, VT))
        e("  v_exp_f32 v%d, v%d" % (VT, VT))
        e("  v_mov_b32 v%d, v%d" % (VM, VMN))
        e("  v_mul_f32 v%d, s56, v%d" % (VNMC, VMN))
        e("  v_mul_f32 v%d, v%d, v%d" % (VL, VL, VT))
        for i in range(24):
            e("  v_mul_f32 v%d, v%d, v%d" % (VA + i, VA + i, VT))
        e("L_skip%d:" % j)
        e("  v_fma_f32 v%d, v%d, s56, -v%d" % (VS0, VS0, VNMC))
        e("  v_fma_f32 v%d, v%d, s56, -v%d" % (VS1, VS1, VNMC))
        e("  v_exp_f32 v%d, v%d" % (VS0, VS0))
        e("  v_exp_f32 v%d, v%d" % (VS1, VS1))
        e("  s_nop 0")
        e("  v_add_f32 v%d, v%d, v%d" % (VL, VL, VS0))
        e("  v_cvt_pk_bf16_f32 v%d, v%d, v%d" % (VPP, VS0, VS1))
        e("  v_add_f32 v%d, v%d, v%d" % (VL, VL, VS1))
        e("  s_waitcnt vmcnt(%d)" % (12 * DEP - 6))
        for i in range(12):
            t0 = VT + (i % 2) * 2; t1 = t0 + 1
            e("  v_perm_b32 v%d, v%d, v%d, s57" % (t0, v + 12 + i, v + i))
            e("  v_perm_b32 v%d, v%d, v%d, s58" % (t1, v + 12 + i, v + i))
            e("  v_dot2c_f32_bf16 v%d, v%d, v%d" % (VA + 2 * i, t0, VPP))
            e("  v_dot2c_f32_bf16 v%d, v%d, v%d" % (VA + 2 * i + 1, t1, VPP))
        loads(v, 28)
        e("  v_add_u32 v%d, %d, v%d" % (VOFF, STRIDE, VOFF))
        if NSTEP % DEP != 0 or j == DEP - 1:
            dec = 1 if NSTEP % DEP != 0 else DEP
            e("  s_sub_u32 s59, s59, %d" % dec)
            e("  s_cmp_eq_u32 s59, 0")
            if j == DEP - 1:
                e("  s_cbranch_scc0 L_loop")
            else:
                e("  s_cbranch_scc1 L_done")
    e("L_done:")
    if stamp:
        e("  s_memrealtime s[72:73]")
    T0 = VT; T1 = VT + 1; VMW = VT + 2; VF = VT + 3
    def allred(op, src, dst):
        e("  v_%s_dpp v%d, v%d, v%d row_ror:8 row_mask:0xf bank_mask:0xf" % (op, dst, src, src))
        for sw in ["v_permlane16_swap_b32", "v_permlane32_swap_b32"]:
            e("  v_mov_b32 v%d, v%d" % (T0, dst))
            e("  v_mov_b32 v%d, v%d" % (T1, dst))
            e("  s_nop 1")
            e("  %s v%d, v%d" % (sw, T0, T1))
            e("  v_%s v%d, v%d, v%d" % (op, dst, T0, T1))
    e("  s_nop 1")
    allred("max_f32", VM, VMW)
    e("  v_sub_f32 v%d, v%d, v%d" % (VF, VM, VMW))
    e("  v_mul_f32 v%d, s56, v%d" % (VF, VF))
    e("  v_exp_f32 v%d, v%d" % (VF, VF))
    e("  s_nop 0")
    e("  v_mul_f32 v%d, v%d, v%d" % (VL, VL, VF))
    for i in range(24):
        e("  v_mul_f32 v%d, v%d, v%d" % (VA + i, VA + i, VF))
    allred("add_f32", VL, VL)
    for i in range(3):
        for ee in range(4):
            e("  v_permlane32_swap_b32 v%d, v%d" % (VA + 8 * i + ee, VA + 8 * i + ee + 4))
    for i in range(3):
        for ee in range(4):
            e("  v_add_f32 v%d, v%d, v%d" % (VA + 8 * i + ee, VA + 8 * i + ee, VA + 8 * i + ee + 4))
    e("  s_nop 1")
    for i in range(3):
        for ee in range(2):
            e("  v_permlane16_swap_b32 v%d, v%d" % (VA + 8 * i + ee, VA + 8 * i + ee + 2))
    for i in range(3):
        for ee in range(2):
            e("  v_add_f32 v%d, v%d, v%d" % (VA + 8 * i + ee, VA + 8 * i + ee, VA + 8 * i + ee + 2))
    e("  s_nop 1")
    for i in range(3):
        e("  v_add_f32_dpp v%d, v%d, v%d row_ror:8 row_mask:0xf bank_mask:0x3" % (VA + 8 * i + 2, VA + 8 * i, VA + 8 * i))
        e("  v_add_f32_dpp v%d, v%d, v%d row_ror:8 row_mask:0xf bank_mask:0xc" % (VA + 8 * i + 2, VA + 8 * i + 1, VA + 8 * i + 1))
    e("  v_lshrrev_b32 v%d, 6, v0" % T0)
    e("  v_mul_u32_u24 v%d, 800, v%d            ; wave base in LDS" % (T0, T0))
    e("  v_bfe_u32 v%d, v0, 3, 3" % T1)
    e("  v_lshlrev_b32 v%d, 2, v%d" % (T1, T1))
    e("  v_lshl_add_u32 v%d, v%d, 1, v%d        ; (l&7)*32 + (l>>3)*4" % (T1, VQO, T1))
    e("  v_add_u32 v%d, v%d, v%d" % (T1, T1, T0))
    for i in range(3):
        e("  ds_write_b32 v%d, v%d offset:%d" % (T1, VA + 8 * i + 2, 256 * i))
    e("  v_mov_b32 v%d, v%d" % (VF, VL))
    assert VMW % 2 == 0
    e("  ds_write_b64 v%d, v[%d:%d] offset:768" % (T0, VMW, VF))
    e("  s_waitcnt vmcnt(0) lgkmcnt(0)")
    e("  s_barrier")
    e("  v_cmp_gt_u32 vcc, 64, v0")
    e("  s_cbranch_vccz L_end")
    ML = VR; OO = VR + 2 * NW
    if OO % 4: OO += 4 - OO % 4
    e("  v_lshlrev_b32 v%d, 4, v0" % T1)
    e("  v_mov_b32 v%d, 0" % T0)
    for w in range(NW):
        e("  ds_read_b64 v[%d:%d], v%d offset:%d" % (ML + 2 * w, ML + 2 * w + 1, T0, 800 * w + 768))
    e("  v_min_u32 v%d, %d, v%d" % (VS0, 47 * 16, T1))
    for w in range(NW):
        e("  ds_read_b128 v[%d:%d], v%d offset:%d" % (OO + 4 * w, OO + 4 * w + 3, VS0, 800 * w))
    e("  s_lshl_b32 s62, s60, %d" % (10 + int(math.log2(S))))
    e("  s_add_u32 s44, s20, s62")
    e("  s_addc_u32 s45, s21, 0")
    e("  s_mov_b32 s46, %d" % (1024 * S))
    e("  s_mov_b32 s47, 0x20000")
    e("  s_add_u32 s48, s16, s63")
    e("  s_addc_u32 s49, s17, 0")
    e("  s_mov_b32 s50, %d" % ROW)
    e("  s_mov_b32 s51, 0x20000")
    e("  s_mov_b32 s52, s18")
    e("  s_mov_b32 s53, s19")
    e("  s_mov_b32 s54, 256")
    e("  s_mov_b32 s55, 0x20000")
    e("  s_lshl_b32 s62, s61, 10                ; split*1024")
    e("  s_lshl_b32 s65, s60, 2                 ; head*4")
    def combine(n, ML, OO, RM, RL, RO):
        e("  v_mov_b32 v%d, v%d" % (RM, ML))
        for w in range(1, n):
            e("  v_max_f32 v%d, v%d, v%d" % (RM, RM, ML + 2 * w))
        for w in range(n):
            e("  v_sub_f32 v%d, v%d, v%d" % (ML + 2 * w, ML + 2 * w, RM))
        for w in range(n):
            e("  v_mul_f32 v%d, s56, v%d" % (ML + 2 * w, ML + 2 * w))
        for w in range(n):
            e("  v_exp_f32 v%d, v%d" % (ML + 2 * w, ML + 2 * w))
        e("  s_nop 0")
        return
    def combine2(n, ML, OO, RL, RO):
        e("  v_mul_f32 v%d, v%d, v%d" % (RL, ML, ML + 1))
        for c in range(4):
            e("  v_mul_f32 v%d, v%d, v%d" % (RO + c, ML, OO + c))
        for w in range(1, n):
            e("  v_fmac_f32 v%d, v%d, v%d" % (RL, ML + 2 * w, ML + 2 * w + 1))
            for c in range(4):
                e("  v_fmac_f32 v%d, v%d, v%d" % (RO + c, ML + 2 * w, OO + 4 * w + c))
    RO = VA
    assert RO % 4 == 0
    e("  s_waitcnt lgkmcnt(%d)" % min(NW, 15))
    combine(NW, ML, OO, VM, VL, RO)
    e("  s_waitcnt lgkmcnt(0)")
    combine2(NW, ML, OO, VL, RO)
    e("  v_cmp_eq_u32 vcc, 48, v0")
    e("  s_nop 1")
    e("  v_cndmask_b32 v%d, v%d, v%d, vcc" % (RO, RO, VM))
    e("  v_cndmask_b32 v%d, v%d, v%d, vcc" % (RO + 1, RO + 1, VL))
    e("  s_mov_b64 exec, 0x1ffffffffffff" if False else "  s_mov_b32 exec_lo, -1")
    e("  s_mov_b32 exec_hi, 0x1ffff")
    e("  buffer_store_dwordx4 v[%d:%d], v%d, s[44:47], s62 offen sc0 sc1" % (RO, RO + 3, T1))
    e("  s_mov_b64 exec, 1")
    e("  v_mov_b32 v%d, 1" % VS0)
    e("  s_waitcnt vmcnt(0)")
    e("  buffer_atomic_add v%d, off, s[52:55], s65 sc0 sc1" % VS0)
    e("  s_waitcnt vmcnt(0)")
    e("  v_readfirstlane_b32 s64, v%d" % VS0)
    e("  s_mov_b64 exec, -1")
    e("  s_cmp_eq_u32 s64, %d" % (S - 1))
    e("  s_cbranch_scc0 L_fin")
    ML = VR; OO = VR + 2 * S
    if OO % 4: OO += 4 - OO % 4
    for s in range(S):
        e("  s_movk_i32 s62, %d" % (1024 * s))
        e("  buffer_load_dwordx2 v[%d:%d], off, s[44:47], s62 offset:768 sc0 sc1" % (ML + 2 * s, ML + 2 * s + 1))
    for s in range(S):
        e("  s_movk_i32 s62, %d" % (1024 * s))
        e("  buffer_load_dwordx4 v[%d:%d], v%d, s[44:47], s62 offen sc0 sc1" % (OO + 4 * s, OO + 4 * s + 3, T1))
    e("  s_waitcnt vmcnt(%d)" % S)
    combine(S, ML, OO, VM, VL, RO)
    e("  s_waitcnt vmcnt(0)")
    combine2(S, ML, OO, VL, RO)
    e("  v_rcp_f32 v%d, v%d" % (VL, VL))
    e("  v_lshlrev_b32 v%d, 3, v0" % T1)
    for c in range(4):
        e("  v_mul_f32 v%d, v%d, v%d" % (RO + c, RO + c, VL))
    e("  v_cvt_pk_bf16_f32 v%d, v%d, v%d" % (RO, RO, RO + 1))
    e("  v_cvt_pk_bf16_f32 v%d, v%d, v%d" % (RO + 1, RO + 2, RO + 3))
    e("  buffer_store_dwordx2 v[%d:%d], v%d, s[48:51], 0 offen" % (RO, RO + 1, T1))
    e("L_fin:")
    if stamp:
        e("  s_memrealtime s[74:75]")
        e("  s_getreg_b32 s76, hwreg(HW_REG_XCC_ID)")
        e("  s_getreg_b32 s77, hwreg(HW_REG_HW_ID)")
        e("  s_lshl_b32 s62, s2, 6")
        e("  s_add_u32 s62, s62, 0x1000000")
        e("  s_add_u32 s44, s20, s62")
        e("  s_addc_u32 s45, s21, 0")
        e("  s_mov_b32 s46, 64")
        e("  s_waitcnt lgkmcnt(0)")
        for i in range(8):
            e("  v_mov_b32 v%d, s%d" % (VR + i, 70 + i))
        e("  s_mov_b64 exec, 1")
        e("  buffer_store_dwordx4 v[%d:%d], off, s[44:47], 0" % (VR, VR + 3))
        e("  buffer_store_dwordx4 v[%d:%d], off, s[44:47], 0 offset:16" % (VR + 4, VR + 7))
    e("L_end:")
    e("  s_endpgm")
    e('.section .rodata,"a"')
    e(".p2align 6")
    e(".amdhsa_kernel %s_kernel" % NAME)
    e("  .amdhsa_next_free_vgpr %d" % NV)
    e("  .amdhsa_next_free_sgpr 80")
    e("  .amdhsa_accum_offset %d" % ((NV + 3) // 4 * 4))
    e("  .amdhsa_group_segment_fixed_size 0")
    e("  .amdhsa_kernarg_size 72")
    e("  .amdhsa_user_sgpr_count 2")
    e("  .amdhsa_user_sgpr_kernarg_segment_ptr 1")
    e("  .amdhsa_system_sgpr_workgroup_id_x 1")
    e(".end_amdhsa_kernel")
    return "\n".join(o) + "\n"

if __name__ == "__main__":
    ap = argparse.ArgumentParser()
    ap.add_argument("-S", type=int, default=4)
    ap.add_argument("-W", type=int, default=8)
    ap.add_argument("-D", type=int, default=2)
    ap.add_argument("-f", default="nt")
    ap.add_argument("--splitmajor", action="store_true")
    ap.add_argument("--stamp", action="store_true")
    ap.add_argument("-o", default="cdna_kernels/%s.s" % NAME)
    a = ap.parse_args()
    open(a.o, "w").write(gen(a.S, a.W, a.D, a.f, not a.splitmajor, a.stamp))
```

```python
import struct, sys, math

NAME = "standalone__tree_speculative_verify_tree_attention_over_candidate_token_tree__decode"
HEADER = open("cdna_kernels/%s.s.ref" % NAME).read().split("; Override launch")[0]

def f32(x):
    return struct.unpack("<I", struct.pack("<f", x))[0]

D = 192; C = 8192; NH = 64; ROW = 384
SCALE = D ** -0.5
CEXP = SCALE * math.log2(math.e)
STEPB = 6144; HB = C * ROW
ML_OFF = 0x800000
HINT_OFF = 0x900000
GL_OFF = 0x910000

def gen(split=(0, 0, 1, 0), caps=(9, 10, 11, 13, 14, 16, 18), Lc=3, M=12, tu=16, xc=None, stamp=False, lflags="nt",
        endun=1, pref=1, forceslow=False, bumpk=(3, 1), bumpv=(3, 1), l0=None, l1=7, bumpt=2, vtouch=True, tagat=8, m64mode=0):
    R = 4; G = 512; NIT = 16; NG = 16
    assert not split[0] and not split[3]
    visits = []
    for w in range(4):
        visits += [(2 * w, 1, 2), (2 * w + 1, 1, 2)] if split[w] else [(2 * w, 0, 4)]
    V = len(visits)
    ends = []; t = 0
    for b, wide, n in visits:
        t += n; ends.append(NIT - t)
    VMASK = sum(1 << x for x in ends)
    tvtab = []; k = 0
    for w in range(4):
        tvtab.append(k); k += 2 if split[w] else 1
    anyw = any(split)
    LDS_SC = 4096; LDS_Q = 4096; LDSB = 4096 + 3072 + 256
    NL = len(caps)
    if l0 is None: l0 = Lc
    o = []; e = o.append
    VOFF = 1; VLD = 2; VM = 3; VNMC = 4; VTS = 5; VP0 = 6; VP1 = 7; VB0 = 8; VB1 = 9
    VT = 10; VHO = 14; VST = 15; VQ = 16
    VMA = 16; VL16 = 17; VAD = 18; VAM = 19; VOUT = 20; VDUM = 21; VMSK = 24
    VA = 28; VAP = 44
    VSC = 52; VSN = 60
    VOLD = 68; VCUR = 69; VPUB = 70; VSO = 71
    VGO = 72; VTG = 73; VQA = 74; VY = 75; VG = 76
    VML = 80; VONE = 84; VRES = 88
    VR = VRES + 4 * V
    def SL(j): return VR + j * 24
    NV = VR + R * 24
    e(HEADER.rstrip("\n"))
    e("; Override launch geometry by editing the next line.")
    e("; @launch grid=(%d,1,1) block=(64,1,1) lds=%d" % (G, LDSB))
    e('.amdgcn_target "amdgcn-amd-amdhsa--gfx950"')
    e(".text")
    e(".globl %s_kernel" % NAME)
    e(".p2align 8")
    e(".type %s_kernel,@function" % NAME)
    e("%s_kernel:" % NAME)
    if stamp: e("  s_memrealtime s[90:91]")
    e("  s_load_dwordx16 s[4:19], s[0:1], 0")
    e("  s_load_dwordx2 s[20:21], s[0:1], 64     ; ws")
    e("  s_cmp_ge_u32 s2, %d" % G)
    e("  s_cbranch_scc1 L_end")
    e("  s_and_b32 s60, s2, 15")
    e("  s_bfe_u32 s61, s2, 0x40004")
    e("  s_lshl_b32 s61, s61, 1")
    e("  s_lshr_b32 s62, s2, 8")
    e("  s_add_u32 s61, s61, s62")
    e("  v_and_b32 v%d, 7, v0" % VQA)
    e("  v_lshlrev_b32 v%d, 4, v%d               ; (lane&7)*16" % (VQA, VQA))
    e("  v_lshrrev_b32 v%d, 3, v0" % VLD)
    e("  v_mul_u32_u24 v%d, %d, v%d" % (VT + 1, ROW, VLD))
    e("  v_add_u32 v%d, v%d, v%d" % (VOFF, VQA, VT + 1))
    e("  s_mul_i32 s70, s61, %d" % STEPB)
    e("  s_mul_i32 s62, s60, %d" % HB)
    e("  s_add_u32 s70, s70, s62")
    e("  s_mov_b32 s68, s70")
    e("  s_mul_i32 s63, s60, %d" % ROW)
    e("  s_mov_b32 s26, %d" % (NH * HB))
    e("  s_mov_b32 s27, 0x20000")
    e("  s_mov_b32 s34, %d" % (NH * ROW))
    e("  s_mov_b32 s35, 0x20000")
    e("  s_waitcnt lgkmcnt(0)")
    if stamp: e("  s_memrealtime s[92:93]")
    e("  s_mov_b32 s32, s4")
    e("  s_mov_b32 s33, s5")
    e("  s_mov_b32 s24, s6")
    e("  s_mov_b32 s25, s7")
    for i in range(3):
        e("  buffer_load_dwordx4 v[%d:%d], v%d, s[32:35], s63 offen offset:%d" % (VQ + 4 * i, VQ + 4 * i + 3, VQA, 128 * i))
    OFFS = [0, 128, 256, 3072, 3200, 3328]
    def loads(base, idx):
        for i in idx:
            e("  buffer_load_dwordx4 v[%d:%d], v%d, s[24:27], s68 offen offset:%d %s" %
              (base + 4 * i, base + 4 * i + 3, VOFF, OFFS[i], lflags))
    def adv(j):
        e("  s_add_u32 s68, s68, s23")
    e("  s_mov_b32 s23, %d                   ; step stride" % (32 * STEPB))
    for j in range(R):
        loads(SL(j), range(6)); adv(j)
    e("  s_and_b32 s72, s2, 7")
    e("  s_lshl_b32 s72, s72, 12")
    e("  s_add_u32 s72, s72, %d" % HINT_OFF)
    e("  s_add_u32 s52, s20, s72")
    e("  s_addc_u32 s53, s21, 0")
    e("  s_mov_b32 s54, 256")
    e("  s_mov_b32 s55, 0x20000")
    e("  v_lshlrev_b32 v%d, 2, v0" % VHO)
    e("  buffer_load_dword v%d, v%d, s[52:55], 0 offen nt" % (VOLD, VHO))
    if stamp: e("  s_memrealtime s[82:83]")
    e("  s_lshr_b32 s99, s2, 3")
    e("  s_lshl_b32 s80, s99, 2")
    e("  v_lshlrev_b32 v%d, 12, v0" % VSO)
    e("  v_add_u32 v%d, s80, v%d                ; only lane 0 in range" % (VSO, VSO))
    t0 = sum((visits[k][0] if k < V else 15) << (4 * k) for k in range(8))
    t1 = sum((visits[k][0] + (0 if visits[k][1] else 1) if k < V else 15) << (4 * k) for k in range(8))
    e("  s_mov_b32 s72, 0x%x" % t0)
    e("  s_bitcmp1_b32 s2, 3")
    e("  s_cselect_b32 s72, 0x%x, s72" % t1)
    e("  v_lshlrev_b32 v%d, 2, v%d" % (VY, VLD))
    e("  v_lshrrev_b32 v%d, v%d, s72" % (VY, VY))
    e("  v_and_b32 v%d, 15, v%d" % (VY, VY))
    e("  v_mul_u32_u24 v%d, %d, v%d" % (VY, 8 * ROW, VY))
    e("  s_and_b32 s22, s2, 7                   ; x")
    e("  s_mul_i32 s72, s22, %d" % ROW)
    e("  v_add3_u32 v%d, v%d, s72, v%d" % (VY, VY, VQA))
    for i in range(3):
        e("  buffer_load_dwordx4 v[%d:%d], v%d, s[32:35], 0 offen offset:%d" % (VA + 12 + 4 * i, VA + 12 + 4 * i + 3, VY, 128 * i))
    if xc:
        e("  s_add_u32 s32, s20, %d" % GL_OFF)
        e("  s_addc_u32 s33, s21, 0")
        e("  s_cmp_lt_u32 s2, 8")
        e("  s_cselect_b32 s34, 32, 0")
    e("  s_lshr_b32 s65, s61, 3")
    e("  s_lshl_b32 s62, s65, 4")
    e("  s_add_u32 s62, s62, s60")
    e("  s_lshl_b32 s65, s65, 2")
    e("  s_mov_b32 s72, 0x%x" % sum(tvtab[w] << (4 * w) for w in range(4)))
    e("  s_bitcmp1_b32 s2, 3")
    e("  s_cselect_b32 s72, 0x%x, s72" % sum((tvtab[w] + split[w]) << (4 * w) for w in range(4)))
    e("  s_lshr_b32 s65, s72, s65")
    e("  s_and_b32 s65, s65, 15")
    e("  s_mul_i32 s63, s62, %d" % ROW)
    e("  s_add_u32 s48, s16, s63")
    e("  s_addc_u32 s49, s17, 0")
    e("  s_mov_b32 s50, %d" % ROW)
    e("  s_mov_b32 s51, 0x20000")
    e("  s_lshl_b32 s72, s22, 16")
    e("  s_add_u32 s44, s20, s72")
    e("  s_addc_u32 s45, s21, 0")
    e("  s_mov_b32 s46, %d" % ((V - 1) * 512 * 1024 + 64 * 1024))
    e("  s_mov_b32 s47, 0x20000")
    e("  s_bfe_u32 s73, s2, 0x10003             ; hb")
    if m64mode == 0:
        e("  s_lshr_b32 s72, s61, 1")
        e("  s_lshl_b32 s72, s72, 1")
        e("  s_add_u32 s72, s72, s73")
        e("  s_lshl_b32 s72, s72, 1")
        e("  s_and_b32 s80, s61, 1")
        e("  s_add_u32 s72, s72, s80")
    else:
        e("  s_lshl_b32 s72, s73, 5")
        e("  s_add_u32 s72, s72, s61")
    e("  s_mul_i32 s72, s72, %d" % STEPB)
    e("  s_mul_i32 s97, s22, %d" % HB)
    e("  s_add_u32 s97, s97, s72")
    e("  s_lshl_b32 s73, s73, 5")
    e("  s_add_u32 s96, s73, s61")
    e("  s_lshl_b32 s72, s22, 5")
    e("  s_add_u32 s76, s18, s72")
    e("  s_addc_u32 s77, s19, 0")
    e("  s_mov_b32 s40, s76")
    e("  s_mov_b32 s41, s77")
    e("  s_mov_b32 s42, 4")
    e("  s_mov_b32 s43, 0x20000")
    e("  s_mov_b32 s39, 0x20000")
    e("  v_lshlrev_b32 v%d, 5, v%d              ; LDS score address" % (VLD, VLD))
    e("  s_mov_b32 s56, 0x%08x                  ; scale*log2(e)" % f32(CEXP))
    e("  s_mov_b32 s71, %d" % (NIT - 1))
    e("  v_mov_b32 v%d, 0xff800000" % VM)
    e("  s_mov_b64 s[66:67], 1")
    e("  s_mov_b32 s75, 1")
    e("  s_mov_b32 s74, %d" % l0)
    e("  s_mov_b32 s31, 0                       ; bias << 16")
    e("  s_mov_b32 s69, 0")
    e("  s_mov_b32 s59, 0")
    e("  s_getreg_b32 s57, hwreg(HW_REG_XCC_ID, 0, 4)")
    e("  s_lshl_b32 s58, s57, 16")
    e("  s_mov_b32 s100, 0")
    if xc: e("  s_mov_b32 s3, %d                       ; iterations to the next global checkpoint" % (xc["first"] - 2))
    if stamp:
        e("  s_mov_b32 s88, 0")
        e("  v_mov_b32 v%d, 0" % VST)
    def outoff(dst, tmp):
        e("  v_bfe_u32 v%d, v0, 4, 1" % dst)
        e("  v_lshlrev_b32 v%d, 8, v%d" % (dst, dst))
        e("  v_bfe_u32 v%d, v0, 5, 1" % tmp)
        e("  v_lshl_add_u32 v%d, v%d, 7, v%d" % (dst, tmp, dst))
        e("  v_and_b32 v%d, 7, v0" % tmp)
        e("  v_lshl_add_u32 v%d, v%d, 4, v%d" % (dst, tmp, dst))
        e("  s_and_b32 s72, s61, 3")
        e("  s_lshl_b32 s72, s72, 2")
        e("  s_bfe_u32 s73, s61, 0x10002")
        e("  s_lshl_b32 s73, s73, 1")
        e("  s_add_u32 s72, s72, s73")
        e("  v_add_u32 v%d, s72, v%d" % (dst, dst))
    def red8(regs, op="add"):
        for mod in ["quad_perm:[1,0,3,2]", "quad_perm:[2,3,0,1]", "row_half_mirror"]:
            for r in regs:
                e("  v_%s_f32_dpp v%d, v%d, v%d %s row_mask:0xf bank_mask:0xf" % (op, r, r, r, mod))
            if mod != "row_half_mirror" and len(regs) < 3:
                e("  s_nop %d" % (max(0, 2 - len(regs))))
    def pstamp():
        if stamp:
            e("  s_memrealtime s[94:95]")
            e("  s_mov_b32 m0, s88")
            e("  s_add_u32 s88, s88, 1")
            e("  s_waitcnt lgkmcnt(0)")
            e("  v_writelane_b32 v%d, s94, m0" % VST)
            e("  s_add_u32 s89, s88, 31")
            e("  s_mov_b32 m0, s89")
            e("  s_ashr_i32 s89, s31, 16")
            e("  v_writelane_b32 v%d, s89, m0" % VST)
    pstamp()
    e("  s_branch L_kbody")
    e("L_defer:")
    e("  s_cmp_eq_u32 s75, 2")
    e("  s_cbranch_scc1 L_defer2")
    e("  s_mov_b32 s75, 2")
    e("  s_mov_b32 s74, %d" % l1)
    e("  s_load_dword s64, s[14:15], 0")
    e("  v_lshlrev_b32 v%d, 4, v0" % VB0)
    e("  s_lshl_b32 s72, s65, 7")
    e("  v_add_u32 v%d, s72, v%d                ; q of the task head in LDS" % (VB1, VQA))
    e("  s_waitcnt vmcnt(%d)" % (6 * R))
    for i in range(3):
        e("  ds_write_b128 v%d, v[%d:%d] offset:%d" % (VB0, VA + 12 + 4 * i, VA + 12 + 4 * i + 3, LDS_Q + 1024 * i))
    for i in range(3):
        e("  ds_read_b128 v[%d:%d], v%d offset:%d" % (VA + 12 + 4 * i, VA + 12 + 4 * i + 3, VB1, LDS_Q + 1024 * i))
    e("  s_mov_b32 s38, %d" % (NH * ROW))
    e("  s_mov_b32 s36, s10")
    e("  s_mov_b32 s37, s11")
    for i in range(3):
        e("  buffer_load_dwordx4 v[%d:%d], v%d, s[36:39], s63 offen offset:%d" % (VA + 4 * i, VA + 4 * i + 3, VQA, 128 * i))
    outoff(VB1, VB0)
    e("  s_add_u32 s36, s12, s63")
    e("  s_addc_u32 s37, s13, 0")
    e("  s_mov_b32 s38, %d" % ROW)
    e("  buffer_load_ushort v%d, v%d, s[36:39], 0 offen" % (VY, VB1))
    e("  s_cmp_eq_u32 s61, 0")
    e("  s_cbranch_scc0 L_kbody")
    e("  buffer_load_dword v%d, off, s[44:47], 0 offset:12 sc1   ; a tag word an earlier launch left" % VTG)
    if xc: e("  buffer_load_dword v%d, v%d, s[32:35], 0 offen sc1" % (VGO, VHO))
    if vtouch:
        e("  s_mov_b32 s36, s8")
        e("  s_mov_b32 s37, s9")
        e("  s_mov_b32 s38, %d" % (NH * HB))
        e("  buffer_load_dword v%d, off, s[36:39], s70 nt   ; translation of the first V rows" % VTS)
    e("  s_branch L_kbody")
    e("L_defer2:")
    e("  s_waitcnt vmcnt(%d)" % (6 * R))
    e("  v_lshlrev_b32 v%d, 16, v%d" % (VY, VY))
    e("  v_cmp_le_u32 vcc, 48, v0")
    e("  v_readlane_b32 s81, v%d, s99           ; own hint word on entry" % VOLD)
    e("  v_readfirstlane_b32 s101, v%d          ; stale tag sample" % VTG)
    e("  v_cndmask_b32 v%d, v%d, 1.0, vcc" % (VY, VY))
    e("  v_mov_b32 v%d, v%d" % (VCUR, VOLD))
    e("  v_mov_b32 v%d, 0" % VTS)
    if xc:
        e("  s_and_b32 s72, s2, 7")
        e("  v_readlane_b32 s98, v%d, s72" % VGO)
        for j in range(R): e("  v_mov_b32 v%d, v%d" % (VG + j, VGO))
    e("  s_waitcnt lgkmcnt(0)")
    for i in range(12):
        e("  v_dot2c_f32_bf16 v%d, v%d, v%d" % (VTS, VA + i, VA + 12 + i))
    e("  s_lshr_b32 s72, s62, 5")
    e("  s_lshl_b32 s72, s72, 4")
    e("  s_lshr_b32 s64, s64, s72")
    e("  s_lshl_b32 s64, s64, 16")
    e("  v_mov_b32 v%d, s64" % VT)
    e("  v_sub_f32 v%d, 1.0, v%d" % (VT, VT))
    e("  v_mul_f32 v%d, 0x%08x, v%d             ; (1-mask)*-1e9/scale" % (VT, f32(-1e9 / SCALE), VT))
    red8([VTS])
    e("  v_add_f32 v%d, v%d, v%d                ; score of the tree token of the task head" % (VTS, VTS, VT))
    off0 = int(round((Lc - 1) * 256.0 / M + (3 * 256.0 / M - 64) / 2))
    e("  s_mov_b32 s64, %d" % off0)
    e("  s_branch L_kfb")
    def pick_tag(ret=True, sr=101):
        e("  s_mul_i32 s30, s%d, 0x9e3779b1" % sr)
        e("  s_add_u32 s30, s30, 0x7f4a7c15")
        e("  s_or_b32 s30, s30, 1")
        e("  s_xor_b32 s78, s30, 2")
        e("  s_cmp_eq_u32 s30, s%d" % sr)
        e("  s_cselect_b32 s30, s78, s30")
        e("  s_mov_b32 s78, s30")
        e("  s_mov_b32 s79, 0")
        if ret:
            e("  s_atomic_cmpswap s[78:79], s[76:77], 0 glc")
        else:
            e("  v_mov_b32 v%d, s78" % VB0)
            e("  v_mov_b32 v%d, 0" % VB1)
            e("  buffer_atomic_cmpswap v[%d:%d], v%d, s[40:43], 0 offen sc1" % (VB0, VB1, VHO))
    cwn = [0]
    def capwait(n):
        cwn[0] += 1
        L = "L_fw%d" % cwn[0]
        for lv in range(NL, 0, -1):
            e("  s_cmp_ge_u32 s74, %d" % lv)
            e("  s_cbranch_scc1 %s" % L)
            e("  s_waitcnt vmcnt(%d)" % (caps[lv - 1] - n))
        e("%s:" % L)
    def fbcheck(tag):
        e("  s_waitcnt vmcnt(%d)" % (6 * R))
        e("  v_sub_u32 v%d, v%d, v%d" % (VPUB, VCUR, VOLD))
        e("  v_readfirstlane_b32 s74, v%d" % VCUR)
        e("  v_and_b32 v%d, 0xffff, v%d" % (VPUB, VPUB))
        e("  v_cmp_ne_u32 s[0:1], 0, v%d            ; words written in this launch" % VPUB)
        e("  v_cmp_le_u32 vcc, s75, v%d             ; peers that had passed my checkpoint" % VPUB)
        e("  s_add_u32 s75, s75, 1")
        e("  s_bcnt1_i32_b64 s72, vcc")
        e("  v_cmp_le_u32 vcc, s75, v%d             ; peers a whole iteration ahead" % VPUB)
        e("  s_ashr_i32 s74, s74, 20")
        e("  s_bcnt1_i32_b64 s73, vcc")
        e("  s_bitcmp1_b32 s0, 0")
        e("  s_cselect_b32 s74, s74, 0")
        if tag == "v":
            e("  v_bfe_u32 v%d, v%d, 16, 4" % (VPUB, VCUR))
            e("  v_cmp_eq_u32 vcc, s57, v%d" % VPUB)
            e("  s_and_b64 s[0:1], s[0:1], vcc")
            e("  s_cmp_eq_u64 s[0:1], -1")
            e("  s_cselect_b32 s100, %d, 0" % (0 if forceslow else 1))
        if xc:
            e("  s_cmp_lt_u32 s2, 8")
            e("  s_cbranch_scc1 L_xa%s" % tag)
            e("L_xc%s:" % tag)
        e("  s_add_u32 s80, s81, s75")
        e("  s_and_b32 s80, s80, 0xffff")
        e("  s_or_b32 s80, s80, s58")
        e("  s_lshl_b32 s1, s31, 4")
        e("  s_or_b32 s80, s80, s1")
        e("  v_mov_b32 v%d, s80" % VPUB)
        e("  s_add_i32 s74, s74, s72")
        e("  s_add_i32 s74, s74, s64")
        e("  s_mul_i32 s74, s74, %d" % M)
        e("  s_ashr_i32 s74, s74, 8")
        e("  s_max_i32 s74, s74, 0")
        e("  s_min_i32 s74, s74, %d" % (NL - 1))
        e("  s_cmp_ge_u32 s73, %d" % tu)
        e("  s_cselect_b32 s74, %d, s74" % NL)
        if tag == "k":
            e("  s_cmp_le_u32 s75, 3")
            e("  s_cselect_b32 s74, %d, s74" % Lc)
        if endun is not None and tag == "v":
            e("  s_cmp_le_u32 s71, %d" % endun)
            e("  s_cselect_b32 s74, %d, s74" % NL)
        e("  buffer_load_dword v%d, v%d, s[52:55], 0 offen nt" % (VCUR, VHO))
        e("  buffer_store_dword v%d, v%d, s[52:55], 0 offen" % (VPUB, VSO))
    def xcblock(tag):
        if not xc: return
        e("L_xa%s:" % tag)
        e("  s_sub_u32 s3, s3, 1")
        e("  s_cmp_eq_u32 s3, %d" % (xc["P"] - 1))
        e("  s_cselect_b32 s79, s72, s79")
        e("  s_cmp_eq_u32 s3, %d" % (xc["P"] - xc["dly"]))
        e("  s_cbranch_scc0 L_xd%s" % tag)
        e("  s_cmp_le_u32 s75, %d" % xc["first"])
        e("  s_cbranch_scc1 L_xd%s" % tag)
        e("  s_cmp_gt_u32 s75, %d" % (xc["last"] + xc["dly"]))
        e("  s_cbranch_scc1 L_xd%s" % tag)
        kr = xc.get("kr", 0.0)
        e("  s_lshl_b32 s80, s59, 8")
        e("  s_mul_i32 s79, s79, %d" % int(kr * 256))
        e("  s_sub_i32 s80, s80, s79")
        e("  s_add_i32 s80, s80, %d" % int((xc["c0"] + 32 * kr) * 256))
        e("  s_mov_b32 s59, 0")
        e("  s_movk_i32 s79, %d" % int(xc["g"] * 256))
        e("  s_cmp_gt_u32 s75, %d" % (xc["first"] + xc["dly"]))
        e("  s_cselect_b32 s79, %d, s79" % int(xc.get("g2", xc["g"]) * 256))
        e("  s_mul_i32 s80, s80, s79")
        e("  s_ashr_i32 s31, s31, 8")
        e("  s_mul_i32 s31, s31, %d" % int(xc["h"] * 256))
        e("  s_add_i32 s31, s31, s80")
        e("  s_min_i32 s31, s31, %d" % (xc["bmax"] << 16))
        e("  s_max_i32 s31, s31, %d" % (xc["bmin"] * 65536))
        e("  s_and_b32 s31, s31, 0xffff0000")
        e("L_xd%s:" % tag)
        e("  s_cmp_le_u32 s3, %d" % xc["pre"])
        e("  s_cselect_b32 s69, 1, 0")
        e("  s_cmp_gt_u32 s3, %d" % (xc["P"] - xc["dly"]))
        e("  s_cselect_b32 s69, 1, s69")
        e("  s_cmp_lt_u32 s75, %d" % (xc["first"] - xc["pre"]))
        e("  s_cselect_b32 s69, 0, s69")
        e("  s_cmp_gt_u32 s75, %d" % (xc["last"] + xc["dly"]))
        e("  s_cselect_b32 s69, 0, s69")
        e("  s_cmp_eq_u32 s3, 0")
        e("  s_cbranch_scc0 L_xc%s" % tag)
        e("  s_mov_b32 s3, %d" % xc["P"])
        e("  s_cmp_gt_u32 s75, %d" % xc["last"])
        e("  s_cbranch_scc1 L_xc%s" % tag)
        e("  s_add_u32 s80, s98, s75")
        e("  v_mov_b32 v%d, s80" % VB0)
        e("  s_lshl_b32 s80, s2, 2")
        e("  v_lshlrev_b32 v%d, 12, v0" % VB1)
        e("  buffer_store_dword v%d, v%d, s[32:35], s80 offen sc1" % (VB0, VB1))
        e("  s_branch L_xc%s" % tag)
    xs = []
    def xsample(j, tag):
        if not xc: return
        if tag == "v" and xc["last"] + xc["dly"] <= NIT: return
        e("  s_cmp_lg_u32 s69, 0")
        e("  s_cbranch_scc1 L_xs%s%d" % (tag, j))
        e("L_xr%s%d:" % (tag, j))
        xs.append((j, tag))
    def xsblocks():
        for j, tag in xs:
            e("L_xs%s%d:" % (tag, j))
            e("  s_waitcnt vmcnt(%d)" % (6 * R))
            e("  v_sub_u32 v%d, v%d, v%d" % (VPUB, VG + j, VGO))
            e("  s_nop 0")
            e("  v_readlane_b32 s80, v%d, s2" % VPUB)
            e("  buffer_load_dword v%d, v%d, s[32:35], 0 offen sc1" % (VG + j, VHO))
            e("  s_nop 0")
            e("  v_cmp_lt_u32 vcc, s80, v%d" % VPUB)
            e("  s_and_b32 s72, vcc_lo, 0xff")
            e("  s_bcnt1_i32_b32 s72, s72")
            e("  v_cmp_gt_u32 vcc, s80, v%d" % VPUB)
            e("  s_add_i32 s59, s59, s72")
            e("  s_and_b32 s72, vcc_lo, 0xff")
            e("  s_bcnt1_i32_b32 s72, s72")
            e("  s_sub_i32 s59, s59, s72")
            e("  s_branch L_xr%s%d" % (tag, j))
    def bump(b, j):
        if b and b[0] == j:
            e("  s_bitcmp1_b32 0x%x, s71" % VMASK)
            e("  s_cselect_b32 s72, %d, 0" % b[1])
            e("  s_add_u32 s74, s74, s72")
    def nextwin(tag):
        e("  s_bitcmp1_b32 0x%x, s71" % VMASK)
        e("  s_cbranch_scc1 L_win%s" % tag)
        e("L_winr%s:" % tag)
    def winblock(tag):
        e("L_win%s:" % tag)
        for v in range(V - 1):
            b, wide, n = visits[v + 1]
            e("  s_add_u32 s68, s%d, %d" % (97 if wide else 70, 8 * b * HB))
            e("  s_mov_b32 s23, %d" % ((64 if wide else 32) * STEPB))
            e("  s_cmp_eq_u32 s71, %d" % ends[v])
            e("  s_cbranch_scc1 L_winr%s" % tag)
        if tag == "k":
            e("  s_mov_b32 s24, s8                      ; the last K iteration refills the ring with V")
            e("  s_mov_b32 s25, s9")
            e("  s_mov_b32 s68, s70")
        e("  s_branch L_winr%s" % tag)
    T0 = VB0; T1 = VB1
    def allred(op, src, dst):
        e("  v_%s_dpp v%d, v%d, v%d row_ror:8 row_mask:0xf bank_mask:0xf" % (op, dst, src, src))
        for sw in ["v_permlane16_swap_b32", "v_permlane32_swap_b32"]:
            e("  v_mov_b32 v%d, v%d" % (T0, dst))
            e("  v_mov_b32 v%d, v%d" % (T1, dst))
            e("  s_nop 1")
            e("  %s v%d, v%d" % (sw, T0, T1))
            e("  v_%s v%d, v%d, v%d" % (op, dst, T0, T1))
    e("L_kloop:")
    pstamp()
    e("  s_cmp_le_u32 s75, 2")
    e("  s_cbranch_scc1 L_defer")
    e("L_kfb:")
    fbcheck("k")
    nextwin("k")
    e("  s_waitcnt lgkmcnt(0)")
    e("L_kbody:")
    for j in range(R):
        k = SL(j); s0 = VSC + 2 * j; s1 = s0 + 1
        bump(bumpk, j)
        if bumpt and j == 2:
            e("  s_cmp_eq_u32 s71, 0")
            e("  s_cselect_b32 s72, %d, 0" % bumpt)
            e("  s_add_u32 s74, s74, s72")
        for r in (s0, VB0, s1, VB1): e("  v_mov_b32 v%d, 0" % r)
        e("  s_waitcnt vmcnt(%d)" % (6 * R - 3))
        for i in range(0, 12, 2):
            e("  v_dot2c_f32_bf16 v%d, v%d, v%d" % (s0, k + i, VQ + i))
            e("  v_dot2c_f32_bf16 v%d, v%d, v%d" % (VB0, k + i + 1, VQ + i + 1))
        capwait(3)
        loads(k, range(3))
        e("  s_waitcnt vmcnt(%d)" % (6 * R - 3))
        for i in range(0, 12, 2):
            e("  v_dot2c_f32_bf16 v%d, v%d, v%d" % (s1, k + 12 + i, VQ + i))
            e("  v_dot2c_f32_bf16 v%d, v%d, v%d" % (VB1, k + 12 + i + 1, VQ + i + 1))
        capwait(3)
        loads(k, range(3, 6))
        e("  v_add_f32 v%d, v%d, v%d" % (s0, s0, VB0))
        e("  v_add_f32 v%d, v%d, v%d" % (s1, s1, VB1))
        adv(j)
        red8([s0, s1])
        e("  v_max3_f32 v%d, v%d, v%d, v%d" % (VM, VM, s0, s1))
        if j % 2 == 1:
            e("  ds_write_b128 v%d, v[%d:%d] offset:%d" % (VLD, s0 - 2, s0 + 1, 8 * (j - 1)))
        xsample(j, "k")
    e("  v_add_u32 v%d, %d, v%d" % (VLD, 64 * R, VLD))
    e("  s_bitcmp1_b32 0x%x, s71" % VMASK)
    e("  s_cbranch_scc0 L_kmid")
    e("  v_add_u32 v%d, 128, v%d" % (VQA, VQA))
    for i in range(3):
        e("  ds_read_b128 v[%d:%d], v%d offset:%d" % (VQ + 4 * i, VQ + 4 * i + 3, VQA, LDS_Q + 1024 * i))
    allred("max_f32", VM, VM)
    e("  v_cndmask_b32 v%d, v%d, v%d, s[66:67]" % (VML, VML, VM))
    e("  s_lshl_b64 s[66:67], s[66:67], 1")
    e("  v_mov_b32 v%d, 0xff800000" % VM)
    assert tagat in ends
    e("  s_cmp_eq_u32 s71, %d" % tagat)
    e("  s_cbranch_scc0 L_kmid")
    e("  s_cmp_eq_u32 s96, 0")
    e("  s_cbranch_scc0 L_kmid")
    pick_tag(False)
    e("L_kmid:")
    e("  s_sub_u32 s71, s71, 1")
    e("  s_cbranch_scc0 L_kloop")
    e("  v_subrev_u32 v%d, %d, v%d" % (VLD, LDS_SC, VLD))
    e("  buffer_load_dword v%d, off, s[40:43], 0 sc1" % VTG)
    e("  s_mov_b32 s71, %d" % (NIT - 1))
    e("  s_mov_b64 s[66:67], 1")
    e("  s_mov_b32 s29, 0                       ; visit")
    e("  s_lshl_b32 s28, s96, 10")
    e("  s_lshl_b32 s72, s22, 10")
    e("  s_add_u32 s72, s72, %d" % ML_OFF)
    e("  s_add_u32 s36, s20, s72")
    e("  s_addc_u32 s37, s21, 0")
    e("  s_mov_b32 s38, %d" % ((V - 1) * 8192 + 1024))
    WMASK = sum(1 << k for k in range(V) if visits[k][1])
    e("  s_and_b32 s73, s96, 32")
    e("  s_bitcmp1_b32 0x%x, s65" % WMASK)
    e("  s_cselect_b32 s73, 0, s73")
    e("  s_cselect_b32 s101, 1, 0")
    e("  s_lshl_b32 s62, s65, 19")
    e("  s_and_b32 s72, s61, 7")
    e("  s_lshl_b32 s72, s72, 7")
    e("  s_add_u32 s62, s62, s72")
    e("  s_lshl_b32 s72, s73, 10")
    e("  s_add_u32 s62, s62, s72")
    e("  s_lshl_b32 s63, s65, 13")
    e("  s_lshl_b32 s72, s73, 4")
    e("  s_add_u32 s63, s63, s72")
    e("  s_waitcnt lgkmcnt(0)")
    for h in range(R // 2):
        e("  ds_read_b128 v[%d:%d], v%d offset:%d" % (VSN + 4 * h, VSN + 4 * h + 3, VLD, 16 * h))
    e("  v_and_b32 v%d, 1, v0" % VT)
    e("  v_lshlrev_b32 v%d, 4, v%d" % (VT, VT))
    e("  v_mov_b32 v%d, 0xffff" % (VT + 1))
    e("  v_lshlrev_b32 v%d, v%d, v%d" % (VT, VT, VT + 1))
    e("  v_bfe_u32 v%d, v0, 1, 2" % (VT + 1))
    for r in range(4):
        e("  v_cmp_eq_u32 vcc, %d, v%d" % (r, VT + 1))
        e("  v_mov_b32 v%d, 0x3f803f80" % (VONE + r))
        e("  s_nop 0")
        e("  v_cndmask_b32 v%d, 0, v%d, vcc" % (VMSK + r, VT))
    e("  v_lshlrev_b32 v%d, 13, v0" % VMA)
    e("  s_lshl_b32 s72, s96, 4")
    e("  v_add_u32 v%d, s72, v%d                ; (M,L) granule of visit v in lane v" % (VMA, VMA))
    e("  v_lshlrev_b32 v%d, 4, v0" % VL16)
    e("  v_lshrrev_b32 v%d, 3, v0" % VAM)
    e("  v_and_b32 v%d, 0x70, v%d" % (VAD, VL16))
    e("  v_lshl_add_u32 v%d, v%d, 10, v%d" % (VAD, VAM, VAD))
    e("  v_lshlrev_b32 v%d, 4, v%d" % (VAM, VAM))
    e("  v_mov_b32 v%d, 0" % (VML + 2))
    outoff(VOUT, VB0)
    e("L_vinit:")
    e("  v_readlane_b32 s72, v%d, s29" % VML)
    for i in range(0, 16, 2): e("  v_mov_b64 v[%d:%d], 0" % (VA + i, VA + i + 1))
    e("  v_mov_b32 v%d, s72" % VNMC)
    e("  v_mul_f32 v%d, s56, v%d" % (VNMC, VNMC))
    for q in range(V - 1, 0, -1):
        e("  v_mov_b64 v[%d:%d], v[%d:%d]" % (VRES + 4 * q, VRES + 4 * q + 1, VRES + 4 * q - 4, VRES + 4 * q - 3))
        e("  v_mov_b32 v%d, v%d" % (VRES + 4 * q + 2, VRES + 4 * q - 2))
    e("L_vloop:")
    e("  s_waitcnt lgkmcnt(0)")
    for i in range(2 * R):
        e("  v_fma_f32 v%d, v%d, s56, -v%d" % (VSC + i, VSN + i, VNMC))
    pstamp()
    e("  s_cmp_eq_u32 s71, 0")
    e("  s_cbranch_scc1 L_vlast")
    fbcheck("v")
    nextwin("v")
    e("  s_cmp_eq_u32 s71, %d" % pref)
    e("  s_cbranch_scc1 L_pf")
    e("L_nopf:")
    e("  v_add_u32 v%d, %d, v%d" % (VLD, 64 * R, VLD))
    for h in range(R // 2):
        e("  ds_read_b128 v[%d:%d], v%d offset:%d" % (VSN + 4 * h, VSN + 4 * h + 3, VLD, 16 * h))
    def prep(j):
        s0 = VSC + 2 * j; s1 = s0 + 1
        e("  v_exp_f32 v%d, v%d" % (s0, s0))
        e("  v_exp_f32 v%d, v%d" % (s1, s1))
        e("  s_nop 0")
        e("  v_cvt_pk_bf16_f32 v%d, v%d, v%d" % (VP0, s0, s0))
        e("  v_cvt_pk_bf16_f32 v%d, v%d, v%d" % (VP1, s1, s1))
        for r in range(4): e("  v_and_b32 v%d, v%d, v%d" % (VAP + r, VMSK + r, VP0))
        for r in range(4): e("  v_and_b32 v%d, v%d, v%d" % (VAP + 4 + r, VMSK + r, VP1))
    def mm(v, b):
        a = VAP + 4 * b
        for i in range(3):
            e("  v_mfma_f32_16x16x32_bf16 v[%d:%d], v[%d:%d], v[%d:%d], v[%d:%d]" %
              (VA + 4 * i, VA + 4 * i + 3, a, a + 3, v + 12 * b + 4 * i, v + 12 * b + 4 * i + 3, VA + 4 * i, VA + 4 * i + 3))
    def ml(b):
        a = VAP + 4 * b
        e("  v_mfma_f32_16x16x32_bf16 v[%d:%d], v[%d:%d], v[%d:%d], v[%d:%d]" %
          (VA + 12, VA + 15, a, a + 3, VONE, VONE + 3, VA + 12, VA + 15))
    for j in range(R):
        v = SL(j)
        bump(bumpv, j)
        prep(j)
        ml(0)
        e("  s_waitcnt vmcnt(%d)" % (6 * R - 3))
        mm(v, 0)
        ml(1)
        capwait(3); loads(v, range(3))
        e("  s_waitcnt vmcnt(%d)" % (6 * R - 3))
        mm(v, 1)
        capwait(3); loads(v, range(3, 6))
        adv(j)
        xsample(j, "v")
    e("  s_bitcmp1_b32 0x%x, s71" % VMASK)
    e("  s_cbranch_scc1 L_flush0")
    e("  s_sub_u32 s71, s71, 1")
    e("  s_branch L_vloop")
    e("L_vlast:")
    for j in range(R):
        v = SL(j)
        prep(j)
        ml(0)
        e("  s_waitcnt vmcnt(%d)" % (6 * (R - 1 - j) + 3))
        mm(v, 0)
        ml(1)
        e("  s_waitcnt vmcnt(%d)" % (6 * (R - 1 - j)))
        mm(v, 1)
    if stamp: e("  s_memrealtime s[84:85]")
    e("  s_nop 1")
    e("L_flush0:")
    e("  v_readfirstlane_b32 s30, v%d" % VTG)
    e("  s_add_u32 s29, s29, 1")
    e("  v_permlane32_swap_b32 v%d, v%d" % (VA + 12, VA + 13))
    e("  v_mov_b32 v%d, s30" % (VRES + 3))
    e("  v_mov_b32 v%d, s30" % (VML + 3))
    e("  v_add_f32 v%d, v%d, v%d" % (VA + 12, VA + 12, VA + 13))
    for i in range(3):
        e("  v_permlane32_swap_b32 v%d, v%d" % (VA + 4 * i, VA + 4 * i + 1))
        e("  v_permlane32_swap_b32 v%d, v%d" % (VA + 4 * i + 2, VA + 4 * i + 3))
    e("  v_cndmask_b32 v%d, v%d, v%d, s[66:67]" % (VML + 1, VML + 1, VA + 12))
    e("  s_cmp_eq_u32 s30, 0")
    for i in range(3):
        e("  v_add_f32_dpp v%d, v%d, v%d row_ror:8 row_mask:0xf bank_mask:0x3" % (VRES + i, VA + 4 * i + 1, VA + 4 * i))
        e("  v_add_f32_dpp v%d, v%d, v%d row_ror:8 row_mask:0xf bank_mask:0xc" % (VRES + i, VA + 4 * i + 2, VA + 4 * i + 3))
    e("  s_cbranch_scc1 L_nost")
    e("  buffer_store_dwordx4 v[%d:%d], v%d, s[44:47], s28 offen" % (VRES, VRES + 3, VL16))
    e("  s_mov_b64 exec, s[66:67]")
    e("  buffer_store_dwordx4 v[%d:%d], v%d, s[36:39], 0 offen" % (VML, VML + 3, VMA))
    e("  s_mov_b64 exec, -1")
    e("L_nost:")
    e("  s_lshl_b64 s[66:67], s[66:67], 1")
    e("  s_add_u32 s28, s28, %d" % (512 * 1024))
    e("  s_sub_u32 s71, s71, 1")
    e("  s_cbranch_scc0 L_vinit")
    e("  s_cmp_eq_u32 s30, 0")
    e("  s_cselect_b32 s100, 0, s100")
    e("  s_mov_b32 s73, 0x400000")
    e("  s_cmp_eq_u32 s100, 0")
    e("  s_cbranch_scc1 L_slow")
    if stamp: e("  s_memrealtime s[82:83]")
    VX = VP0; VMX = VP1
    def pl(NJ, fl):
        OO = VR; MM = VR + 4 * NJ
        for j in range(NJ):
            e("  buffer_load_dwordx4 v[%d:%d], v%d, s[36:39], s63 offen offset:%d %s" % (MM + 4 * j, MM + 4 * j + 3, VAM, 128 * j, fl))
        for j in range(NJ):
            e("  s_add_u32 s72, s62, %d" % (8192 * j))
            e("  buffer_load_dwordx4 v[%d:%d], v%d, s[44:47], s72 offen %s" % (OO + 4 * j, OO + 4 * j + 3, VAD, fl))
    def combine(NJ):
        OO = VR; MM = VR + 4 * NJ
        e("L_poll%d:" % NJ)
        e("  s_cmp_lt_u32 s73, 0x3fffc0")
        e("  s_cbranch_scc1 L_polls%d" % NJ)
        pl(NJ, "nt")
        e("L_pollc%d:" % NJ)
        e("  s_sub_u32 s73, s73, 1")
        e("  s_cbranch_scc1 L_fin")
        e("  s_waitcnt vmcnt(%d)" % NJ)
        e("  v_max3_f32 v%d, v%d, v%d, v%d" % (VMX, VTS, MM, MM + 4))
        for j in range(2, NJ, 2):
            e("  v_max3_f32 v%d, v%d, v%d, v%d" % (VMX, VMX, MM + 4 * j, MM + 4 * j + 4))
        for j in range(NJ): e("  v_xor_b32 v%d, s30, v%d" % (MM + 4 * j + 3, MM + 4 * j + 3))
        allred("max_f32", VMX, VMX)
        e("  v_mul_f32 v%d, s56, v%d" % (VMX, VMX))
        for j in range(NJ): e("  v_fma_f32 v%d, v%d, s56, -v%d" % (MM + 4 * j, MM + 4 * j, VMX))
        e("  v_fma_f32 v%d, v%d, s56, -v%d" % (VMX, VTS, VMX))
        for j in range(NJ): e("  v_exp_f32 v%d, v%d" % (MM + 4 * j, MM + 4 * j))
        e("  v_exp_f32 v%d, v%d" % (VMX, VMX))
        e("  v_or_b32 v%d, v%d, v%d" % (VX, MM + 3, MM + 7))
        for j in range(2, NJ, 2):
            e("  v_or3_b32 v%d, v%d, v%d, v%d" % (VX, VX, MM + 4 * j + 3, MM + 4 * j + 7))
        e("  v_mul_f32 v%d, v%d, v%d" % (VT + 3, MM, MM + 1))
        for j in range(1, NJ): e("  v_fmac_f32 v%d, v%d, v%d" % (VT + 3, MM + 4 * j, MM + 4 * j + 1))
        e("  s_waitcnt vmcnt(0)")
        for j in range(NJ): e("  v_xor_b32 v%d, s30, v%d" % (OO + 4 * j + 3, OO + 4 * j + 3))
        for j in range(0, NJ, 2):
            e("  v_or3_b32 v%d, v%d, v%d, v%d" % (VX, VX, OO + 4 * j + 3, OO + 4 * j + 7))
        e("  v_cmp_ne_u32 vcc, 0, v%d" % VX)
        e("  s_cbranch_vccnz L_poll%d" % NJ)
        for c in range(3): e("  v_mul_f32 v%d, v%d, v%d" % (VT + c, MM, OO + c))
        for j in range(1, NJ):
            for c in range(3): e("  v_fmac_f32 v%d, v%d, v%d" % (VT + c, MM + 4 * j, OO + 4 * j + c))
    e("L_comb:")
    if anyw:
        e("  s_cmp_lg_u32 s101, 0")
        e("  s_cbranch_scc1 L_poll8")
    combine(4)
    e("L_final:")
    e("  s_nop 1")
    e("  v_permlane32_swap_b32 v%d, v%d" % (VT, VT + 1))
    e("  v_permlane32_swap_b32 v%d, v%d" % (VT + 2, VT + 3))
    e("  v_add_f32 v%d, v%d, v%d" % (VT, VT, VT + 1))
    e("  v_add_f32 v%d, v%d, v%d" % (VT + 2, VT + 2, VT + 3))
    e("  s_nop 1")
    e("  v_permlane16_swap_b32 v%d, v%d" % (VT, VT + 2))
    e("  v_add_f32 v%d, v%d, v%d" % (VT, VT, VT + 2))
    e("  s_nop 1")
    e("  v_add_f32_dpp v%d, v%d, v%d row_ror:8 row_mask:0xf bank_mask:0xf" % (VT, VT, VT))
    e("  v_fmac_f32 v%d, v%d, v%d               ; tree token" % (VT, VMX, VY))
    e("  s_nop 0")
    e("  v_readlane_b32 s72, v%d, 48" % VT)
    e("  s_nop 1")
    e("  v_rcp_f32 v%d, s72" % (VT + 1))
    e("  s_nop 0")
    e("  v_mul_f32 v%d, v%d, v%d" % (VT, VT, VT + 1))
    e("  v_cvt_pk_bf16_f32 v%d, v%d, v%d" % (VT, VT, VT))
    e("  buffer_store_short v%d, v%d, s[48:51], 0 offen" % (VT, VOUT))
    e("  s_branch L_fin" if stamp else "  s_endpgm")
    if anyw:
        combine(8)
        e("  s_branch L_final")
    e("L_slow:                                  ; general placement: write everything through")
    e("  s_cmp_lg_u32 s30, 0")
    e("  s_cbranch_scc1 L_havetag")
    e("  buffer_load_dword v%d, off, s[44:47], 0 offset:12 sc1   ; the tag was not published yet -> choose it here" % VTG)
    e("  s_waitcnt vmcnt(0) lgkmcnt(0)")
    e("  v_readfirstlane_b32 s80, v%d" % VTG)
    e("  s_nop 0")
    pick_tag(True, 80)
    e("  s_waitcnt lgkmcnt(0)")
    e("  s_cmp_lg_u32 s78, 0")
    e("  s_cselect_b32 s30, s78, s30")
    e("L_havetag:")
    e("  s_waitcnt vmcnt(0)")
    e("  v_mov_b32 v%d, s30" % (VML + 3))
    e("  buffer_store_dwordx4 v[%d:%d], v%d, s[36:39], 0 offen sc1" % (VML, VML + 3, VMA))
    for q in range(V):
        e("  v_mov_b32 v%d, s30" % (VRES + 4 * q + 3))
        e("  s_sub_u32 s28, s28, %d" % (512 * 1024))
        e("  buffer_store_dwordx4 v[%d:%d], v%d, s[44:47], s28 offen sc1" % (VRES + 4 * q, VRES + 4 * q + 3, VL16))
    e("  s_mov_b32 s73, 0x3fff00")
    e("  s_branch L_comb")
    for NJ in ((4, 8) if anyw else (4,)):
        e("L_polls%d:" % NJ)
        pl(NJ, "sc1")
        e("  s_branch L_pollc%d" % NJ)
    e("L_pf:                                    ; bring the lines of the combine task into L2 before they are polled")
    for h in range(2 if anyw else 1):
        if h:
            e("  s_cmp_eq_u32 s101, 0")
            e("  s_cbranch_scc1 L_nopf")
        for j in range(4 * h, 4 * h + 4):
            e("  buffer_load_dword v%d, v%d, s[36:39], s63 offen offset:%d" % (VDUM, VAM, 128 * j))
        for j in range(4 * h, 4 * h + 4):
            e("  s_add_u32 s72, s62, %d" % (8192 * j))
            e("  buffer_load_dword v%d, v%d, s[44:47], s72 offen" % (VDUM, VAD))
    e("  s_branch L_nopf")
    winblock("k"); winblock("v")
    xcblock("k"); xcblock("v"); xsblocks()
    e("L_fin:")
    if stamp:
        e("  s_memrealtime s[86:87]")
        e("  s_getreg_b32 s88, hwreg(HW_REG_XCC_ID)")
        e("  s_mov_b32 s89, s73")
        e("  s_waitcnt lgkmcnt(0)")
        e("L_wait:")
        e("  s_sleep 32")
        e("  s_memrealtime s[56:57]")
        e("  s_waitcnt lgkmcnt(0)")
        e("  s_sub_u32 s56, s56, s90")
        e("  s_cmp_lt_u32 s56, 9000")
        e("  s_cbranch_scc1 L_wait")
        e("  s_waitcnt vmcnt(0)")
        e("  s_lshl_b32 s62, s2, 6")
        e("  s_add_u32 s62, s62, 0x1000000")
        e("  s_add_u32 s44, s20, s62")
        e("  s_addc_u32 s45, s21, 0")
        e("  s_mov_b32 s46, 64")
        for i in range(14):
            e("  v_mov_b32 v%d, s%d" % (VR + i, 82 + i))
        e("  s_lshl_b32 s62, s2, 8")
        e("  s_add_u32 s62, s62, 0x1100000")
        e("  s_add_u32 s48, s20, s62")
        e("  s_addc_u32 s49, s21, 0")
        e("  s_mov_b32 s50, 256")
        e("  buffer_store_dword v%d, v%d, s[48:51], 0 offen" % (VST, VHO))
        e("  s_mov_b64 exec, 1")
        for i in range(3):
            e("  buffer_store_dwordx4 v[%d:%d], off, s[44:47], 0 offset:%d" % (VR + 4 * i, VR + 4 * i + 3, 16 * i))
        e("  buffer_store_dwordx2 v[%d:%d], off, s[44:47], 0 offset:48" % (VR + 12, VR + 13))
    e("L_end:")
    e("  s_endpgm")
    e('.section .rodata,"a"')
    e(".p2align 6")
    e(".amdhsa_kernel %s_kernel" % NAME)
    e("  .amdhsa_next_free_vgpr %d" % NV)
    e("  .amdhsa_next_free_sgpr 102")
    e("  .amdhsa_accum_offset %d" % min(256, (NV + 3) // 4 * 4))
    e("  .amdhsa_group_segment_fixed_size 0")
    e("  .amdhsa_kernarg_size 72")
    e("  .amdhsa_user_sgpr_count 2")
    e("  .amdhsa_user_sgpr_kernarg_segment_ptr 1")
    e("  .amdhsa_system_sgpr_workgroup_id_x 1")
    e(".end_amdhsa_kernel")
    assert NV <= 256
    return "\n".join(o) + "\n"

Z = dict(P=12, first=9, last=21, dly=3, pre=2, g=0.8, g2=1.4, h=-0.5, c0=6.5, kr=0.17, bmin=-30, bmax=40)
if __name__ == "__main__":
    import os
    os.makedirs("g7", exist_ok=True)
    cfgs = {
        "a_reg": dict(split=(0, 0, 0, 0), xc=Z),
        "b_hyb": dict(xc=Z),
        "c_hyb_m1": dict(xc=Z, m64mode=1),
        "d_hyb2": dict(split=(0, 1, 1, 0), xc=Z),
        "e_reg": dict(split=(0, 0, 0, 0), xc=Z),
        "f_hyb": dict(xc=Z),
    }
    for n, c in cfgs.items():
        open("g7/%s.s" % n, "w").write(gen(**c))
        open("g7/st_%s.s" % n, "w").write(gen(stamp=True, **c))
```
